```python
import torch

def _softmax(x, axis=-1):
    return torch.softmax(x, dim=axis)

def _gelu(x):
    return torch.nn.functional.gelu(x, approximate='tanh')

def _silu(x):
    return torch.nn.functional.silu(x)

def _sigmoid(x):
    return torch.sigmoid(x)

def _layernorm(x, axis=-1, eps=1e-05):
    m = x.mean(dim=axis, keepdim=True)
    v = x.var(dim=axis, keepdim=True, unbiased=False)
    return (x - m) / torch.sqrt(v + eps)

def _scatter_add(tgt, idx, src, axis=0):
    return tgt.clone().index_add_(axis, idx, src)

def _segment_sum(src, seg, n):
    out = torch.zeros((n,) + src.shape[1:], dtype=src.dtype)
    return out.index_add_(0, seg, src)

def _pad(x, pw):
    flat = tuple((v for pair in reversed(pw) for v in pair))
    return torch.nn.functional.pad(x, flat)
kernel_name = 'adaLN_cond__sliding_block_cached__glu_gated_reglu__prompt'

def setup_inputs():

    _w = lambda a: (lambda t: t.to(torch.bfloat16) if t.is_floating_point() else t)(torch.as_tensor(a))

    def _A_setup():
        B, Sq, D = (1, 2048, 640)
        Hq, Hkv, Sk, Dh = (32, 32, 2048, 128)
        assert Hq % Hkv == 0, (Hq, Hkv)
        return {'x': _w((lambda *s: torch.randn(*s, dtype=torch.bfloat16) * 0.05)(B, Sq, D)), 'k_cache': _w((lambda *s: torch.randn(*s, dtype=torch.bfloat16) * 1.6)(B, Hkv, Sk, Dh)), 'v_cache': _w((lambda *s: torch.randn(*s, dtype=torch.bfloat16) * 0.8)(B, Hkv, Sk, Dh)), 'wq': _w((lambda *s: torch.randn(*s, dtype=torch.bfloat16) * 1.6)(D, Hq * Dh) * D ** (-0.5)), 'wo': _w((lambda *s: torch.randn(*s, dtype=torch.bfloat16) * 0.8)(Hq * Dh, D) * (Hq * Dh) ** (-0.5))}
    _A_in = _A_setup()

    def _B_setup():
        B, S, D, F = (1, 2048, 640, 1728)
        return {'x': _w((lambda *s: torch.randn(*s, dtype=torch.bfloat16) * 0.05)(B, S, D)), 'W_gate': _w((lambda *s: torch.randn(*s, dtype=torch.bfloat16) * 0.4)(D, F) * (2.0 / D) ** 0.5), 'W_up': _w((lambda *s: torch.randn(*s, dtype=torch.bfloat16) * 0.4)(D, F) * (2.0 / D) ** 0.5), 'W_down': _w((lambda *s: torch.randn(*s, dtype=torch.bfloat16) * 0.4)(F, D) * (1.0 / F) ** 0.5)}
    _B_in = _B_setup()
    return {'A_x': _A_in['x'], 'A_k_cache': _A_in['k_cache'], 'A_v_cache': _A_in['v_cache'], 'A_wq': _A_in['wq'], 'A_wo': _A_in['wo'], 'B_x': _B_in['x'], 'B_W_gate': _B_in['W_gate'], 'B_W_up': _B_in['W_up'], 'B_W_down': _B_in['W_down'], 'c': _w((lambda *s: torch.randn(*s, dtype=torch.bfloat16) * 0.2)(1, 640) * 8.0), 'w_mod': _w((lambda *s: torch.randn(*s, dtype=torch.bfloat16) * 0.2)(640, 6 * 640) * 640 ** (-0.5) * 8.0)}

def reference(A_x, A_k_cache, A_v_cache, A_wq, A_wo, B_x, B_W_gate, B_W_up, B_W_down, c, w_mod):

    def _A_ref(x, k_cache, v_cache, wq, wo):
        B, Sq, D = x.shape
        Hq, Dh = (32, 128)
        Hkv, Sk = (k_cache.shape[1], k_cache.shape[2])
        W = min(4096, max(256, Sk // 4))
        rep = Hq // Hkv
        q = (lambda x, *d: x.permute(*d))((x @ wq).reshape(B, Sq, Hq, Dh), 0, 2, 1, 3)
        k = (lambda x, n, axis: torch.repeat_interleave(x, n, dim=axis))(k_cache[:, :, Sk - W:, :], rep, axis=1)
        v = (lambda x, n, axis: torch.repeat_interleave(x, n, dim=axis))(v_cache[:, :, Sk - W:, :], rep, axis=1)
        scores = torch.einsum('bhqd,bhkd->bhqk', q, k) * Dh ** (-0.5)
        p = _softmax(scores, axis=-1)
        o = torch.einsum('bhqk,bhkd->bhqd', p, v)
        return (lambda x, *d: x.permute(*d))(o, 0, 2, 1, 3).reshape(B, Sq, Hq * Dh) @ wo

    def _B_ref(x, W_gate, W_up, W_down):
        gate = torch.einsum('bsd,df->bsf', x, W_gate)
        up = torch.einsum('bsd,df->bsf', x, W_up)
        gate = gate * (lambda x, dt: x.to(dt))(gate > 0, gate.dtype)
        h = gate * up
        return torch.einsum('bsf,fd->bsd', h, W_down)
    x = A_x
    mod = (_silu(c) @ w_mod).reshape(c.shape[0], 6, 1, -1)
    sa, ca, ga, sb, cb, gb = (mod[:, 0].clone(), mod[:, 1].clone(), mod[:, 2].clone(), mod[:, 3].clone(), mod[:, 4].clone(), mod[:, 5].clone())
    h = _layernorm(x, axis=-1) * (1 + ca) + sa
    x = x + ga * _A_ref(h, A_k_cache, A_v_cache, A_wq, A_wo)
    h = _layernorm(x, axis=-1) * (1 + cb) + sb
    x = x + gb * _B_ref(h, B_W_gate, B_W_up, B_W_down)
    return x
```

```python
from asmlib import *
from layout import *
import struct

def f2u(x):
    return struct.unpack("<I", struct.pack("<f", x))[0]

A_X, A_K, A_V, A_WQ, A_WO, B_X, B_WG, B_WU, B_WD, C_, WMOD, OUT, DBG, WS = [8*i for i in range(14)]

def srd(a, d, p, off, size):
    if off == 0:
        a(f"s_mov_b32 s{d}, s{p}")
        a(f"s_mov_b32 s{d+1}, s{p+1}")
    else:
        a(f"s_add_u32 s{d}, s{p}, {hex(off)}")
        a(f"s_addc_u32 s{d+1}, s{p+1}, 0")
    a(f"s_mov_b32 s{d+2}, {hex(size)}")
    a(f"s_mov_b32 s{d+3}, 0x20000")

def vr(b, n):
    return f"v[{b}:{b+n-1}]" if n > 1 else f"v{b}"
def ar(b, n):
    return f"a[{b}:{b+n-1}]" if n > 1 else f"a{b}"
def sr(b, n):
    return f"s[{b}:{b+n-1}]" if n > 1 else f"s{b}"

def xreduce_rows(a, op, v, tmp):
    a(f"v_mov_b32 v{tmp}, v{v}")
    a("s_nop 1")
    a(f"v_permlane16_swap_b32 v{v}, v{tmp}")
    a("s_nop 1")
    a(f"{op} v{v}, v{v}, v{tmp}")
    a(f"v_mov_b32 v{tmp}, v{v}")
    a("s_nop 1")
    a(f"v_permlane32_swap_b32 v{v}, v{tmp}")
    a("s_nop 1")
    a(f"{op} v{v}, v{v}, v{tmp}")
```

```python
from gen_common import *

def k0():
    a = Asm()
    a(f"""
    s_cmp_ge_u32 s2, 256
    s_cbranch_scc1 K0_END
    s_and_b32 s3, s2, 7
    s_lshr_b32 s4, s2, 5
    s_lshl_b32 s4, s4, 3
    s_add_u32 s3, s3, s4
    s_cmp_ge_u32 s3, 60
    s_cbranch_scc1 K0_END
    s_load_dwordx4 s[8:11], s[0:1], {C_}      ; c, w_mod
    s_load_dwordx2 s[12:13], s[0:1], {WS}
    s_lshr_b32 s4, s2, 3
    s_and_b32 s4, s4, 3
    s_lshl_b32 s3, s3, 6
    s_lshl_b32 s4, s4, 4
    s_add_u32 s3, s3, s4             ; col0
    v_lshrrev_b32 v1, 1, v0
    v_and_b32 v2, 1, v0
    v_lshlrev_b32 v3, 1, v1          ; c offset
    v_mul_u32_u24 v4, 7680, v1
    v_lshl_add_u32 v4, v2, 4, v4     ; w offset
    s_lshl_b32 s5, s3, 1
    s_waitcnt lgkmcnt(0)
    """)
    srd(a, 16, 8, 0, 1280)
    srd(a, 20, 10, 0, 640*7680)
    srd(a, 24, 12, MOD, 15360)
    for j in range(5):
        a(f"s_add_u32 s6, s5, {j*128*7680}")
        a(f"buffer_load_dwordx4 {vr(16+4*j,4)}, v4, s[20:23], s6 offen")
    for j in range(5):
        a(f"buffer_load_ushort v{8+j}, v3, s[16:19], 0 offen offset:{j*256}")
    for e in range(8):
        a(f"v_mov_b32 v{40+e}, 0")
    a(f"s_mov_b32 s7, {hex(f2u(-1.4426950408889634))}")
    a("s_waitcnt vmcnt(0)")
    for j in range(5):
        c = 8 + j
        a(f"""
        v_lshlrev_b32 v{c}, 16, v{c}
        v_mul_f32 v13, s7, v{c}
        v_exp_f32 v13, v13
        s_nop 0
        v_add_f32 v13, 1.0, v13
        v_rcp_f32 v13, v13
        s_nop 0
        v_mul_f32 v13, v{c}, v13
        v_cvt_pk_bf16_f32 v13, v13, v13
        v_lshlrev_b32 v13, 16, v13
        """)
        for d in range(4):
            w = 16 + 4*j + d
            a(f"v_lshlrev_b32 v14, 16, v{w}")
            a(f"v_and_b32 v15, 0xffff0000, v{w}")
            a(f"v_fmac_f32 v{40+2*d}, v13, v14")
            a(f"v_fmac_f32 v{41+2*d}, v13, v15")
    a(f"""
    v_lshlrev_b32 v5, 5, v0
    ds_write_b128 v5, v[40:43]
    ds_write_b128 v5, v[44:47] offset:16
    v_and_b32 v6, 15, v0             ; col
    v_lshrrev_b32 v7, 4, v0          ; part
    v_lshlrev_b32 v5, 9, v7
    v_lshl_add_u32 v5, v6, 2, v5
    s_waitcnt lgkmcnt(0)
    s_barrier
    """)
    for i in range(8):
        a(f"ds_read_b32 v{16+i}, v5 offset:{i*64}")
    a("s_waitcnt lgkmcnt(0)")
    for i in range(1, 8):
        a(f"v_add_f32 v16, v16, v{16+i}")
    a(f"""
    v_lshlrev_b32 v5, 2, v0
    ds_write_b32 v5, v16 offset:8192
    s_waitcnt lgkmcnt(0)
    s_barrier
    v_cmp_gt_u32 vcc, 16, v0
    s_and_saveexec_b64 s[28:29], vcc
    s_cbranch_execz K0_END
    """)
    for i in range(16):
        a(f"ds_read_b32 v{16+i}, v5 offset:{8192+i*64}")
    a("s_waitcnt lgkmcnt(0)")
    for i in range(1, 16):
        a(f"v_add_f32 v16, v16, v{16+i}")
    a(f"""
    v_cvt_pk_bf16_f32 v16, v16, v16
    v_lshlrev_b32 v16, 16, v16
    v_add_f32 v17, 1.0, v16
    v_cvt_pk_bf16_f32 v17, v17, v17
    v_lshlrev_b32 v17, 16, v17
    s_sub_u32 s30, s3, 640
    s_cmp_lt_u32 s30, 640
    s_cselect_b32 s31, 1, 0
    s_sub_u32 s30, s3, 2560
    s_cmp_lt_u32 s30, 640
    s_cselect_b32 s31, 1, s31
    s_cmp_eq_u32 s31, 1
    s_cbranch_scc0 K0_NOADD
    v_mov_b32 v16, v17
    K0_NOADD:
    s_lshl_b32 s3, s3, 2
    buffer_store_dword v16, v5, s[24:27], s3 offen
    K0_END:
    """)
    return kernel_text("k0_mod_kernel", a.text(), vgpr=48, sgpr=40), ("k0_mod_kernel", (256,1,1), (256,1,1), 9216)
```

```python
from gen_common import *

N_LN, N_WGU, N_TWO, N_TWD = 128, 224, 160, 68
B_WGU = 0
B_LN = B_WGU + N_WGU
B_TWO = B_LN + N_LN
B_TWD = B_TWO + N_TWO
KP_GRID = B_TWD + N_TWD

def frag_addr_setup(a, rs):
    a(f"""
    v_and_b32 v1, 63, v0
    v_lshrrev_b32 v5, 1, v1
    v_mul_u32_u24 v2, {rs}, v5
    v_and_b32 v5, 1, v1
    v_lshl_add_u32 v2, v5, 4, v2
    v_lshrrev_b32 v5, 2, v1
    v_lshlrev_b32 v3, 5, v5
    v_and_b32 v5, 3, v1
    v_lshl_add_u32 v3, v5, 3, v3     ; row*32 + c*8
    v_lshlrev_b32 v4, 4, v1
    """)

def t_role(a, name, base, src_arg, nrows, dst, nks, ntask):
    a(f"""
    {name}:
    s_load_dwordx2 s[8:9], s[0:1], {src_arg}
    s_load_dwordx2 s[12:13], s[0:1], {WS}
    """)
    frag_addr_setup(a, 1280)
    a(f"""
    s_sub_u32 s4, s2, {base}
    s_lshl_b32 s4, s4, 2
    s_add_u32 s4, s4, s3
    s_lshl_b32 s4, s4, 1
    s_lshl_b32 s5, s3, 13
    v_add_u32 v3, s5, v3
    s_waitcnt lgkmcnt(0)
    """)
    srd(a, 16, 8, 0, nrows*1280)
    srd(a, 20, 12, dst, 40*nks*1024)
    for t in range(2):
        a(f"""
        s_add_u32 s6, s4, {t}
        s_mul_hi_u32 s7, s6, {(2**32+9)//10}      ; ks
        s_mul_i32 s24, s7, 10
        s_sub_u32 s24, s6, s24                    ; cb64
        s_mul_i32 s25, s7, {32*1280}
        s_lshl_b32 s26, s24, 7
        s_add_u32 s25, s25, s26
        s_mul_i32 s26, s24, {4*nks*1024}
        s_lshl_b32 s27, s7, 10
        s_add_u32 s{28+t}, s26, s27
        s_cmp_lt_u32 s6, {ntask}
        s_cselect_b32 s25, s25, 0x7000000
        s_cselect_b32 s{28+t}, s{28+t}, 0x7000000
        """)
        for f in range(4):
            a(f"s_add_u32 m0, s5, {(t*4+f)*1024}")
            a(f"s_add_u32 s27, s25, {f*32}")
            a(f"buffer_load_dwordx4 v2, s[16:19], s27 offen lds")
    for t in range(2):
        a(f"s_waitcnt vmcnt({4 if t == 0 else 4})")
        for f in range(4):
            r = 8 + 16*t + 4*f
            a(f"ds_read_b64_tr_b16 {vr(r,2)}, v3 offset:{(t*4+f)*1024}")
            a(f"ds_read_b64_tr_b16 {vr(r+2,2)}, v3 offset:{(t*4+f)*1024+512}")
        for f in range(4):
            r = 8 + 16*t + 4*f
            a(f"s_waitcnt lgkmcnt({6-2*f})")
            a(f"s_add_u32 s27, s{28+t}, {f*nks*1024}")
            a(f"buffer_store_dwordx4 {vr(r,4)}, v4, s[20:23], s27 offen")
    a("s_endpgm")

def wgu_role(a):
    a(f"""
    KP_WGU:
    s_load_dwordx4 s[8:11], s[0:1], {B_WG}
    s_load_dwordx2 s[12:13], s[0:1], {WS}
    """)
    frag_addr_setup(a, 3456)
    a(f"""
    s_sub_u32 s4, s2, {B_WGU}
    s_mul_hi_u32 s5, s4, {(2**32+13)//14}      ; cb
    s_mul_i32 s6, s5, 14
    s_sub_u32 s6, s4, s6                       ; j
    s_lshr_b32 s7, s6, 1                       ; jj
    s_and_b32 s24, s5, 1
    s_add_u32 s7, s7, s24
    s_cmp_ge_u32 s7, 7
    s_cselect_b32 s7, 0, s7
    s_mul_i32 s24, s5, 7
    s_add_u32 s7, s7, s24                      ; ft
    s_lshl_b32 s7, s7, 5
    s_mul_i32 s24, s3, {5*32*3456}
    s_add_u32 s7, s7, s24
    s_mul_i32 s25, s5, {20*14*1024}
    s_lshl_b32 s26, s6, 10
    s_add_u32 s25, s25, s26
    s_mul_i32 s26, s3, {5*14*1024}
    s_add_u32 s25, s25, s26
    s_mul_i32 s5, s3, 5120
    v_add_u32 v3, s5, v3
    v_lshrrev_b32 v5, 4, v1                    ; g
    v_lshlrev_b32 v5, 4, v5                    ; g*16 bytes
    s_mul_i32 s26, s3, {5*128}
    v_add_u32 v5, s26, v5
    s_bitcmp1_b32 s6, 0
    s_waitcnt lgkmcnt(0)
    s_cselect_b32 s8, s10, s8
    s_cselect_b32 s9, s11, s9
    """)
    srd(a, 16, 8, 0, 640*3456)
    srd(a, 20, 12, WGU, 16*20*14*1024)
    srd(a, 28, 12, MOD, 15360)
    srd(a, 32, 12, UT, 2*224*64)
    for i in range(5):
        a(f"s_add_u32 m0, s5, {i*1024}")
        a(f"s_add_u32 s27, s7, {i*32*3456}")
        a(f"buffer_load_dwordx4 v2, s[16:19], s27 offen lds")
    a(f"s_mov_b32 s36, {4*2560}")
    a(f"s_mov_b32 s37, {3*2560}")
    for i in range(5):
        p = 32 + 16*i
        a(f"buffer_load_dwordx4 {vr(p,4)}, v5, s[28:31], s36 offen offset:{i*128}")
        a(f"buffer_load_dwordx4 {vr(p+4,4)}, v5, s[28:31], s36 offen offset:{i*128+64}")
        a(f"buffer_load_dwordx4 {vr(p+8,4)}, v5, s[28:31], s37 offen offset:{i*128}")
        a(f"buffer_load_dwordx4 {vr(p+12,4)}, v5, s[28:31], s37 offen offset:{i*128+64}")
    a("v_mov_b32 v6, 0")
    a("v_mov_b32 v7, 0")
    a("s_waitcnt vmcnt(20)")
    for i in range(5):
        r = 8 + 4*i
        a(f"ds_read_b64_tr_b16 {vr(r,2)}, v3 offset:{i*1024}")
        a(f"ds_read_b64_tr_b16 {vr(r+2,2)}, v3 offset:{i*1024+512}")
    a("s_waitcnt vmcnt(0) lgkmcnt(0)")
    for i in range(5):
        r = 8 + 4*i
        p = 32 + 16*i
        for d in range(4):
            a(f"""
            v_lshlrev_b32 v28, 16, v{r+d}
            v_and_b32 v29, 0xffff0000, v{r+d}
            v_fmac_f32 v7, v28, v{p+8+2*d}
            v_fmac_f32 v7, v29, v{p+9+2*d}
            v_mul_f32 v28, v28, v{p+2*d}
            v_mul_f32 v29, v29, v{p+2*d+1}
            v_cvt_pk_bf16_f32 v{r+d}, v28, v29
            v_lshlrev_b32 v28, 16, v{r+d}
            v_and_b32 v29, 0xffff0000, v{r+d}
            v_add_f32 v6, v6, v28
            v_add_f32 v6, v6, v29
            """)
        a(f"s_add_u32 s27, s25, {i*14*1024}")
        a(f"buffer_store_dwordx4 {vr(r,4)}, v4, s[20:23], s27 offen")
    xreduce_rows(a, "v_add_f32", 6, 28)
    xreduce_rows(a, "v_add_f32", 7, 28)
    a(f"""
    v_and_b32 v28, 15, v1
    v_lshlrev_b32 v28, 3, v28
    s_lshl_b32 s26, s3, 7
    v_add_u32 v29, s26, v28
    ds_write_b64 v29, v[6:7] offset:20480
    s_waitcnt lgkmcnt(0)
    s_barrier
    v_cmp_gt_u32 vcc, 16, v0
    s_and_saveexec_b64 s[38:39], vcc
    s_cbranch_execz KP_END
    ds_read_b64 v[8:9], v28 offset:20480
    ds_read_b64 v[10:11], v28 offset:{20480+128}
    ds_read_b64 v[12:13], v28 offset:{20480+256}
    ds_read_b64 v[14:15], v28 offset:{20480+384}
    v_lshlrev_b32 v28, 2, v0
    s_lshl_b32 s26, s4, 6
    s_add_u32 s27, s26, {224*64}
    s_waitcnt lgkmcnt(0)
    v_add_f32 v8, v8, v10
    v_add_f32 v12, v12, v14
    v_add_f32 v9, v9, v11
    v_add_f32 v13, v13, v15
    v_add_f32 v8, v8, v12
    v_add_f32 v9, v9, v13
    buffer_store_dword v8, v28, s[32:35], s26 offen
    buffer_store_dword v9, v28, s[32:35], s27 offen
    s_endpgm
    """)

def ln_role(a):
    a(f"""
    KP_LN:
    s_load_dwordx2 s[8:9], s[0:1], {A_X}
    s_load_dwordx2 s[12:13], s[0:1], {WS}
    s_sub_u32 s4, s2, {B_LN}
    v_and_b32 v1, 63, v0
    v_and_b32 v2, 3, v1                        ; r
    v_lshrrev_b32 v3, 2, v1                    ; c
    s_lshl_b32 s5, s3, 2                       ; wave*4
    v_add_u32 v2, s5, v2
    v_mul_u32_u24 v4, 1280, v2
    v_lshl_add_u32 v4, v3, 4, v4               ; x offset
    s_mul_i32 s6, s4, {16*1280}
    v_lshlrev_b32 v5, 5, v3
    v_lshrrev_b32 v6, 2, v3
    v_lshlrev_b32 v6, 10, v6
    v_and_b32 v7, 3, v3
    v_lshl_add_u32 v7, v7, 4, v2
    v_lshl_add_u32 v6, v7, 4, v6
    s_mul_i32 s7, s4, 20480
    s_waitcnt lgkmcnt(0)
    """)
    srd(a, 16, 8, 0, 2048*1280)
    srd(a, 20, 12, H1, 128*20480)
    srd(a, 28, 12, MOD, 15360)
    for j in range(5):
        a(f"buffer_load_dwordx4 {vr(8+4*j,4)}, v4, s[16:19], s6 offen offset:{j*256}")
    a(f"s_mov_b32 s36, 2560")
    P = 80
    for j in range(5):
        p = P + 16*j
        a(f"buffer_load_dwordx4 {vr(p,4)}, v5, s[28:31], s36 offen offset:{j*512}")
        a(f"buffer_load_dwordx4 {vr(p+4,4)}, v5, s[28:31], s36 offen offset:{j*512+16}")
        a(f"buffer_load_dwordx4 {vr(p+8,4)}, v5, s[28:31], 0 offen offset:{j*512}")
        a(f"buffer_load_dwordx4 {vr(p+12,4)}, v5, s[28:31], 0 offen offset:{j*512+16}")
    a("s_waitcnt vmcnt(20)")
    X = 32
    for j in range(5):
        for d in range(4):
            a(f"v_lshlrev_b32 v{X+8*j+2*d}, 16, v{8+4*j+d}")
            a(f"v_and_b32 v{X+8*j+2*d+1}, 0xffff0000, v{8+4*j+d}")
    def rowsum(v):
        a("s_nop 1")
        a(f"v_add_f32_dpp v{v}, v{v}, v{v} row_ror:4 row_mask:0xf bank_mask:0xf")
        a("s_nop 1")
        a(f"v_add_f32_dpp v{v}, v{v}, v{v} row_ror:8 row_mask:0xf bank_mask:0xf")
        xreduce_rows(a, "v_add_f32", v, 29)
    a(f"v_add_f32 v72, v{X}, v{X+1}")
    a(f"v_add_f32 v73, v{X+2}, v{X+3}")
    for i in range(4, 40, 2):
        a(f"v_add_f32 v72, v72, v{X+i}")
        a(f"v_add_f32 v73, v73, v{X+i+1}")
    a("v_add_f32 v72, v72, v73")
    rowsum(72)
    a(f"v_mul_f32 v72, {hex(f2u(1/640))}, v72")
    for i in range(40):
        a(f"v_sub_f32 v{X+i}, v{X+i}, v72")
    a(f"v_mul_f32 v73, v{X}, v{X}")
    a(f"v_mul_f32 v74, v{X+1}, v{X+1}")
    for i in range(2, 40, 2):
        a(f"v_fmac_f32 v73, v{X+i}, v{X+i}")
        a(f"v_fmac_f32 v74, v{X+i+1}, v{X+i+1}")
    a("v_add_f32 v73, v73, v74")
    rowsum(73)
    a(f"""
    v_mov_b32 v74, {hex(f2u(1e-5))}
    v_fmac_f32 v74, {hex(f2u(1/640))}, v73
    v_rsq_f32 v74, v74
    s_mov_b32 s37, {hex(f2u(QSCALE))}
    v_mul_f32 v74, s37, v74
    s_waitcnt vmcnt(0)
    """)
    for j in range(5):
        p = P + 16*j
        for e in range(8):
            x = X + 8*j + e
            a(f"v_mul_f32 v{x}, v{x}, v74")
            a(f"v_mul_f32 v{p+8+e}, s37, v{p+8+e}")
            a(f"v_fmac_f32 v{p+8+e}, v{x}, v{p+e}")
        for d in range(4):
            a(f"v_cvt_pk_bf16_f32 v{8+4*j+d}, v{p+8+2*d}, v{p+9+2*d}")
        a(f"s_add_u32 s27, s7, {j*4096}")
        a(f"buffer_store_dwordx4 {vr(8+4*j,4)}, v6, s[20:23], s27 offen")
    a("s_endpgm")

def kp():
    a = Asm()
    a(f"""
    v_lshrrev_b32 v1, 6, v0
    s_cmp_ge_u32 s2, {KP_GRID}
    s_cbranch_scc1 KP_END
    v_readfirstlane_b32 s3, v1
    s_cmp_lt_u32 s2, {B_LN}
    s_cbranch_scc1 KP_WGU
    s_cmp_lt_u32 s2, {B_TWO}
    s_cbranch_scc1 KP_LN
    s_cmp_lt_u32 s2, {B_TWD}
    s_cbranch_scc1 KP_TWO
    s_branch KP_TWD
    """)
    wgu_role(a)
    ln_role(a)
    t_role(a, "KP_TWO", B_TWO, A_WO, 4096, WOF, 128, 1280)
    t_role(a, "KP_TWD", B_TWD, B_WD, 1728, WDF, 54, 540)
    a("KP_END:")
    return kernel_text("kp_prep_kernel", a.text(), vgpr=160, sgpr=48), ("kp_prep_kernel", (KP_GRID,1,1), (256,1,1), 32768)
```

```python
MOD   = 0x0
UT    = 0x4000
UT_T  = UT + 224*16*4
STATS = 0x10000
H1    = 0x40000
X1    = H1 + 128*20*1024
HM    = X1 + 128*20*1024
WOF   = HM + 128*56*1024
WDF   = WOF + 40*128*1024
WGU   = WDF + 40*54*1024
OO    = WGU + 16*20*14*1024
WS_END = OO + 128*128*1024
QSCALE = 1.4426950408889634 * 128 ** -0.5
if __name__ == "__main__":
    for k, v in list(globals().items()):
        if k.isupper(): print(k, hex(v) if isinstance(v, int) else v)
```

```python
import sys, os
from gen_common import *
import gen_k0, gen_kp
HEADER = open("adaLN_cond__sliding_block_cached__glu_gated_reglu__prompt.s.ref").read().split("; Override launch")[0]
def build(path, which):
    ks = []; ls = []
    for f in which:
        k, l = f()
        ks.append(k); ls.append(l)
    hdr = HEADER + ("; PROFINFO [(\"k1\", 0x8000000, 1024, 8), (\"k2\", 0x8100000, 1024, 5), (\"k3\", 0x8200000, 1024, 5), (\"k4\", 0x8300000, 1024, 5)]\n" if os.environ.get("PROF") else "")
    open(path, "w").write(file_text(ls, ks, hdr))
    assemble(path)
if __name__ == "__main__":
    import importlib
    which = [gen_k0.k0, gen_kp.kp]
    for name, fn in (("gen_k1", "k1"), ("gen_k2", "k2"), ("gen_k3", "k3"), ("gen_k2", "k4")):
        try:
            m = importlib.import_module(name)
            which.append(getattr(m, fn))
        except ModuleNotFoundError:
            break
    out = sys.argv[1] if len(sys.argv) > 1 else "full.s"
    build(out, which)
    print("built", out, len(which), "kernels")
```
